```python
import torch

def _softmax(x, axis=-1):
    return torch.softmax(x, dim=axis)
def _gelu(x):
    return torch.nn.functional.gelu(x, approximate="tanh")
def _silu(x):
    return torch.nn.functional.silu(x)
def _sigmoid(x):
    return torch.sigmoid(x)
def _layernorm(x, axis=-1, eps=1e-5):
    m = x.mean(dim=axis, keepdim=True)
    v = x.var(dim=axis, keepdim=True, unbiased=False)
    return (x - m) / torch.sqrt(v + eps)
def _scatter_add(tgt, idx, src, axis=0):
    return tgt.clone().index_add_(axis, idx, src)
def _segment_sum(src, seg, n):
    out = torch.zeros((n,) + src.shape[1:], dtype=src.dtype)
    return out.index_add_(0, seg, src)
def _pad(x, pw):
    flat = tuple(v for pair in reversed(pw) for v in pair)
    return torch.nn.functional.pad(x, flat)

kernel_name = 'sequential_preLN__sliding_local_dilated__glu_gated_glu__prompt'

def setup_inputs():

    _w = (lambda a: (lambda t: t.to(torch.bfloat16) if t.is_floating_point() else t)(torch.as_tensor(a)))
    def _A_setup():
        B, S, D = 1, 2048, 640
        return {
            "x": _w((lambda *s: torch.randn(*s, dtype=torch.bfloat16) * 0.05)(B, S, D)),
            "wqkv": _w((lambda *s: torch.randn(*s, dtype=torch.bfloat16) * 0.05)(D, 3 * D)),
            "wo": _w((lambda *s: torch.randn(*s, dtype=torch.bfloat16) * 0.05)(D, D)),
        }
    _A_in = _A_setup()

    def _B_setup():
        B, S, D, F = 1, 2048, 640, 1536
        return {
            "x": _w((lambda *s: torch.randn(*s, dtype=torch.bfloat16) * 0.05)(B, S, D)),
            "w_gate": _w((lambda *s: torch.randn(*s, dtype=torch.bfloat16) * 0.05)(D, F)),
            "w_up": _w((lambda *s: torch.randn(*s, dtype=torch.bfloat16) * 0.05)(D, F)),
            "w_down": _w((lambda *s: torch.randn(*s, dtype=torch.bfloat16) * 0.05)(F, D)),
        }
    _B_in = _B_setup()

    return {
        "A_x": _A_in["x"],
        "A_wqkv": _A_in["wqkv"],
        "A_wo": _A_in["wo"],
        "B_x": _B_in["x"],
        "B_w_gate": _B_in["w_gate"],
        "B_w_up": _B_in["w_up"],
        "B_w_down": _B_in["w_down"],
    }

def reference(A_x, A_wqkv, A_wo, B_x, B_w_gate, B_w_up, B_w_down):
    def _A_ref(x, wqkv, wo):
        B, S, D = x.shape
        H = 32; Dh = D // H
        W, dil = 8, 2
        qkv = (lambda x, *d: x.permute(*d))((x @ wqkv).reshape(B, S, 3, H, Dh), 2, 0, 3, 1, 4)
        q, k, v = qkv[0], qkv[1], qkv[2]
        scale = Dh ** -0.5
        pos = torch.arange(S)
        off = torch.arange(W) * dil
        idx = pos[:, None] - off[None, :]
        mask = idx >= 0
        idx_c = torch.where(mask, idx, 0).reshape(-1)
        kg = k[:, :, idx_c, :].reshape(B, H, S, W, Dh)
        vg = v[:, :, idx_c, :].reshape(B, H, S, W, Dh)
        logits = torch.einsum("bhsd,bhswd->bhsw", q, kg) * scale
        logits = torch.where(mask[None, None, :, :], logits, -1e9)
        attn = _softmax(logits, axis=-1)
        o = torch.einsum("bhsw,bhswd->bhsd", attn, vg)
        return (lambda x, *d: x.permute(*d))(o, 0, 2, 1, 3).reshape(B, S, D) @ wo

    def _B_ref(x, w_gate, w_up, w_down):
        g = torch.einsum("bsd,df->bsf", x, w_gate)
        u = torch.einsum("bsd,df->bsf", x, w_up)
        h = _sigmoid(g) * u
        return torch.einsum("bsf,fd->bsd", h, w_down)

    x = A_x
    h = x + _A_ref(_layernorm(x, axis=-1), A_wqkv, A_wo)
    h2 = h + _B_ref(_layernorm(h, axis=-1), B_w_gate, B_w_up, B_w_down)
    return h2
```

```python
class K:
    def __init__(self):
        self.lines = []
        self.vm = []
        self.lg = []
        self.nlabel = 0

    def e(self, s):
        for ln in s.split("\n"):
            ln = ln.strip()
            if ln:
                self.lines.append(ln)

    def c(self, s):
        self.lines.append("; " + s)

    def label(self, name):
        self.lines.append(name + ":")

    def newlabel(self, base):
        self.nlabel += 1
        return f"L_{base}_{self.nlabel}"

    def nop(self, n):
        while n > 0:
            k = min(n, 16)
            self.e(f"s_nop {k-1}")
            n -= k

    def vmem(self, s, tag):
        self.e(s)
        self.vm.append(tag)
        assert len(self.vm) <= 200

    def wait_vm(self, tag):
        idx = None
        for j, t in enumerate(self.vm):
            if t == tag:
                idx = j
        if idx is None:
            return
        n = len(self.vm) - 1 - idx
        if n > 63:
            n = 63
            self.e(f"s_waitcnt vmcnt({n})")
            self.vm = self.vm[len(self.vm) - n:]
            return
        self.e(f"s_waitcnt vmcnt({n})")
        self.vm = self.vm[idx + 1:]

    def wait_vm_all(self):
        self.e("s_waitcnt vmcnt(0)")
        self.vm = []

    def ds(self, s, tag):
        self.e(s)
        self.lg.append(tag)

    def wait_lg(self, tag):
        idx = None
        for j, t in enumerate(self.lg):
            if t == tag:
                idx = j
        if idx is None:
            return
        n = len(self.lg) - 1 - idx
        if n > 15:
            n = 15
            self.e(f"s_waitcnt lgkmcnt({n})")
            self.lg = self.lg[len(self.lg) - n:]
            return
        self.e(f"s_waitcnt lgkmcnt({n})")
        self.lg = self.lg[idx + 1:]

    def wait_lg_all(self):
        self.e("s_waitcnt lgkmcnt(0)")
        self.lg = []

    def text(self):
        return "\n".join(self.lines) + "\n"


def vr(base, n=1):
    return f"v{base}" if n == 1 else f"v[{base}:{base+n-1}]"


def ar(base, n=1):
    return f"a{base}" if n == 1 else f"a[{base}:{base+n-1}]"


def sr(base, n=1):
    return f"s{base}" if n == 1 else f"s[{base}:{base+n-1}]"


def interleave(main, fill, start=0, every=1):
    out = []
    fi = 0
    for j, m in enumerate(main):
        out.append(m)
        if j >= start and (j - start) % every == every - 1 and fi < len(fill):
            out.append(fill[fi])
            fi += 1
    out.extend(fill[fi:])
    return out
```

```python
import sys
from kasm import K, vr, ar, sr, interleave

NAME = "sequential_preLN__sliding_local_dilated__glu_gated_glu__prompt_kernel"

WS_FLAG = 0x0
WS_RMF = 0x1000
WS_RMH = 0x1100
WS_STAT = 0x2000
WS_PS = 0x20000
WS_QKV = 0x100000
QKV_G = 0x88000
WS_O = 0xA00000
O_G = 0x2E000
WS_H = 0xD00000
WS_HH = 0x1000000
HH_G = 0x6C000
WS_DBG = 0x2000000
WS_SIZE = 0x3000000
RS = 2304

SRD_X, SRD_W, SRD_WS, SRD_OUT, SRD_DBG = 4, 8, 12, 16, 20
S_G, S_I, S_W, S_NONCE, S_MODE, S_XCC = 36, 37, 38, 39, 40, 41
P_X, P_WQKV, P_WO, P_GATE, P_UP, P_DOWN, P_OUT, P_DBG, P_WS = 68, 70, 72, 76, 78, 80, 82, 84, 86

V_LANE, V_L16, V_G = 1, 2, 3
V_HRES = 240
V_STAMP = 255

POLL_MAX = 20000


class Gen:
    def __init__(self, stop_after=None, stamps=False, force_safe=False):
        self.k = K()
        self.stop_after = stop_after
        self.stamps = stamps
        self.force_safe = force_safe
        self.nstamp = 0

    def stamp(self):
        if not self.stamps:
            return
        k = self.k
        k.e("s_memtime s[98:99]")
        k.e("s_waitcnt lgkmcnt(0)")
        k.lg = []
        k.e(f"v_writelane_b32 v{V_STAMP}, s98, {self.nstamp}")
        self.nstamp += 1

    def srd(self, base, ptr, size):
        k = self.k
        k.e(f"s_mov_b32 s{base}, s{ptr}")
        k.e(f"s_mov_b32 s{base+1}, s{ptr+1}")
        k.e(f"s_mov_b32 s{base+2}, {hex(size)}")
        k.e(f"s_mov_b32 s{base+3}, 0x20000")

    def prologue(self):
        k = self.k
        k.e("s_cmp_ge_u32 s2, 256")
        k.e("s_cbranch_scc1 L_end")
        k.e("s_load_dwordx4 s[68:71], s[0:1], 0")
        k.e("s_load_dwordx2 s[72:73], s[0:1], 16")
        k.e("s_load_dwordx8 s[76:83], s[0:1], 32")
        k.e("s_load_dwordx4 s[84:87], s[0:1], 64")
        k.e(f"s_and_b32 s{S_G}, s2, 7")
        k.e("s_lshr_b32 s3, s2, 7")
        k.e("s_lshl_b32 s3, s3, 3")
        k.e(f"s_add_u32 s{S_G}, s{S_G}, s3")
        k.e(f"s_lshr_b32 s{S_I}, s2, 3")
        k.e(f"s_and_b32 s{S_I}, s{S_I}, 15")
        k.e("v_lshrrev_b32 v4, 6, v0")
        k.e(f"v_and_b32 v{V_LANE}, 63, v0")
        k.e(f"v_readfirstlane_b32 s{S_W}, v4")
        k.e(f"v_and_b32 v{V_L16}, 15, v0")
        k.e(f"v_bfe_u32 v{V_G}, v0, 4, 2")
        k.e(f"s_getreg_b32 s{S_XCC}, hwreg(HW_REG_XCC_ID, 0, 4)")
        k.e(f"s_mov_b32 s{S_NONCE}, 0")
        k.e(f"s_mov_b32 s{S_MODE}, 0")
        if self.stamps:
            k.e(f"v_mov_b32 v{V_STAMP}, 0")
        k.e("s_waitcnt lgkmcnt(0)")
        self.srd(SRD_X, P_X, 2048 * 1280)
        self.srd(SRD_WS, P_WS, WS_SIZE)
        self.srd(SRD_OUT, P_OUT, 2048 * 1280)
        self.srd(SRD_DBG, P_DBG, 256)
        self.srd(SRD_W, P_WQKV, 640 * 3840)
        self.stamp()
        lab = k.newlabel("nolead")
        k.e("s_cmp_lg_u32 s2, 0")
        k.e(f"s_cbranch_scc1 {lab}")
        k.e(f"s_cmp_lg_u32 s{S_W}, 0")
        k.e(f"s_cbranch_scc1 {lab}")
        k.e("s_memrealtime s[42:43]")
        k.e("s_waitcnt lgkmcnt(0)")
        k.e("s_or_b32 s42, s42, 1")
        k.e("v_mov_b32 v4, s42")
        k.e("v_mov_b32 v5, 0")
        k.e("s_mov_b64 exec, 1")
        k.e(f"buffer_store_dword v4, v5, s[{SRD_DBG}:{SRD_DBG+3}], 0 offen sc1")
        k.e("s_mov_b64 exec, -1")
        k.label(lab)

    def rowsum_loads(self, srd, voff, dst, tag):
        k = self.k
        for j in range(5):
            k.vmem(f"buffer_load_dwordx4 v[{dst+4*j}:{dst+4*j+3}], v{voff}, s[{srd}:{srd+3}], 0 offen offset:{256*j}", tag)

    def row_reduce16(self, regs):
        k = self.k
        for sh in (8, 4, 2, 1):
            k.nop(1)
            for r in regs:
                k.e(f"v_add_f32_dpp v{r}, v{r}, v{r} row_ror:{sh} row_mask:0xf bank_mask:0xf")
            if len(regs) < 2:
                k.nop(1)

    def stats_issue(self):
        k = self.k
        k.e(f"v_lshl_add_u32 v4, v{V_G}, 2, s{S_W}")
        k.e("v_min_u32 v5, 8, v4")
        k.e(f"s_mul_i32 s3, s{S_I}, 9")
        k.e("v_add_u32 v54, s3, v5")
        k.e(f"s_lshl_b32 s3, s{S_G}, 7")
        k.e("s_sub_u32 s3, s3, 16")
        k.e("v_add_u32 v6, s3, v54")
        k.e("v_max_i32 v6, 0, v6")
        k.e("v_mul_u32_u24 v7, 1280, v6")
        k.e(f"v_lshl_add_u32 v7, v{V_L16}, 4, v7")
        k.e("v_cmp_gt_u32 vcc, 9, v4")
        k.e(f"v_cmp_eq_u32 s[66:67], 0, v{V_L16}")
        k.nop(2)
        k.e("s_and_b64 s[66:67], s[66:67], vcc")
        self.rowsum_loads(SRD_X, 7, 32, "stat")

    def stats_compute(self):
        k = self.k
        k.wait_vm("stat")
        k.e("v_mov_b32 v8, 0x3f803f80")
        for j in range(20):
            r = 32 + j
            if j < 2:
                k.e(f"v_dot2_f32_bf16 v{10+j}, v{r}, v8, 0")
                k.e(f"v_dot2_f32_bf16 v{12+j}, v{r}, v{r}, 0")
            else:
                k.e(f"v_dot2_f32_bf16 v{10+(j&1)}, v{r}, v8, v{10+(j&1)}")
                k.e(f"v_dot2_f32_bf16 v{12+(j&1)}, v{r}, v{r}, v{12+(j&1)}")
        k.nop(3)
        k.e("v_add_f32 v10, v10, v11")
        k.e("v_add_f32 v12, v12, v13")
        k.nop(1)
        self.row_reduce16([10, 12])
        k.e("v_mul_f32 v52, 0x3acccccd, v10")
        k.e("v_mul_f32 v12, 0x3acccccd, v12")
        k.e("v_fma_f32 v12, -v52, v52, v12")
        k.e("v_max_f32 v12, 0, v12")
        k.e("v_add_f32 v12, 0x3727c5ac, v12")
        k.e("v_rsq_f32 v53, v12")
        k.nop(1)

    def nonce_load(self, tag):
        k = self.k
        k.e("v_mov_b32 v56, 0")
        k.vmem(f"buffer_load_dword v57, v56, s[{SRD_DBG}:{SRD_DBG+3}], 0 offen sc1", tag)

    def nonce_check(self):
        k = self.k
        top, done = k.newlabel("ntop"), k.newlabel("ndone")
        k.e(f"v_readfirstlane_b32 s{S_NONCE}, v57")
        k.e(f"s_mov_b32 s42, {POLL_MAX}")
        k.label(top)
        k.e(f"s_cmp_lg_u32 s{S_NONCE}, 0")
        k.e(f"s_cbranch_scc1 {done}")
        k.e("s_sub_u32 s42, s42, 1")
        k.e("s_cmp_eq_u32 s42, 0")
        k.e(f"s_cbranch_scc1 {done}")
        k.e(f"buffer_load_dword v57, v56, s[{SRD_DBG}:{SRD_DBG+3}], 0 offen sc1")
        k.e("s_waitcnt vmcnt(0)")
        k.e(f"v_readfirstlane_b32 s{S_NONCE}, v57")
        k.e("s_sleep 1")
        k.e(f"s_branch {top}")
        k.label(done)

    def stats_publish(self):
        k = self.k
        k.e("v_mov_b32 v8, v52")
        k.e("v_mov_b32 v9, v53")
        k.e(f"v_mov_b32 v10, s{S_NONCE}")
        k.e(f"v_mov_b32 v11, s{S_XCC}")
        k.e("v_lshlrev_b32 v12, 4, v54")
        k.e(f"s_lshl_b32 s42, s{S_G}, 12")
        k.e(f"s_add_u32 s42, s42, {WS_STAT}")
        k.e("s_mov_b64 exec, s[66:67]")
        k.vmem(f"buffer_store_dwordx4 v[8:11], v12, s[{SRD_WS}:{SRD_WS+3}], s42 offen sc1", "statst")
        k.e("s_mov_b64 exec, -1")
        k.nop(2)

    GR = [224, 228, 232, 236, 240, 244, 248, 32, 36]

    def granule_loads(self, tag):
        k = self.k
        k.e(f"v_lshlrev_b32 v58, 4, v{V_L16}")
        k.e(f"s_lshl_b32 s43, s{S_G}, 12")
        k.e(f"s_add_u32 s43, s43, {WS_STAT}")
        for mt in range(9):
            r = self.GR[mt]
            k.vmem(f"buffer_load_dwordx4 v[{r}:{r+3}], v58, s[{SRD_WS}:{SRD_WS+3}], s43 offen offset:{256*mt} sc1", tag)

    def granule_check(self):
        k = self.k
        top, done = k.newlabel("gtop"), k.newlabel("gdone")
        k.e(f"s_mov_b32 s42, {POLL_MAX}")
        k.label(top)
        k.e(f"v_xor_b32 v59, s{S_NONCE}, v{self.GR[0]+2}")
        for mt in range(1, 9):
            k.e(f"v_xor_b32 v60, s{S_NONCE}, v{self.GR[mt]+2}")
            k.e("v_or_b32 v59, v59, v60")
        k.e("v_cmp_ne_u32 vcc, 0, v59")
        k.nop(2)
        k.e("s_cmp_eq_u64 vcc, 0")
        k.e(f"s_cbranch_scc1 {done}")
        k.e("s_sub_u32 s42, s42, 1")
        k.e("s_cmp_eq_u32 s42, 0")
        k.e(f"s_cbranch_scc1 {done}")
        k.e("s_sleep 2")
        for mt in range(9):
            r = self.GR[mt]
            k.e(f"buffer_load_dwordx4 v[{r}:{r+3}], v58, s[{SRD_WS}:{SRD_WS+3}], s43 offen offset:{256*mt} sc1")
        k.e("s_waitcnt vmcnt(0)")
        k.e(f"s_branch {top}")
        k.label(done)
        k.e(f"v_xor_b32 v59, s{S_XCC}, v{self.GR[0]+3}")
        for mt in range(1, 9):
            k.e(f"v_xor_b32 v60, s{S_XCC}, v{self.GR[mt]+3}")
            k.e("v_or_b32 v59, v59, v60")
        k.e("v_cmp_ne_u32 vcc, 0, v59")
        k.nop(2)
        k.e("s_cmp_eq_u64 vcc, 0")
        k.e(f"s_cselect_b32 s{S_MODE}, 1, 0")
        if self.force_safe:
            k.e(f"s_mov_b32 s{S_MODE}, 0")

    def stores(self, items, tag):
        k = self.k
        safe, done = k.newlabel("stsafe"), k.newlabel("stdone")
        k.e(f"s_cmp_eq_u32 s{S_MODE}, 0")
        k.e(f"s_cbranch_scc1 {safe}")
        for it in items:
            k.e(it)
        k.e(f"s_branch {done}")
        k.label(safe)
        for it in items:
            if it.startswith("buffer_store"):
                k.e(it + " sc1")
            else:
                k.e(it)
        k.label(done)
        for it in items:
            if it.startswith("buffer_store"):
                k.vm.append(tag)

    def sync(self, n):
        k = self.k
        k.c(f"---- sync {n}")
        k.wait_vm_all()
        k.wait_lg_all()
        k.e("s_barrier")
        skip = k.newlabel("syskip")
        k.e(f"s_cmp_lg_u32 s{S_W}, 0")
        k.e(f"s_cbranch_scc1 {skip}")
        k.e(f"s_lshl_b32 s42, s{S_G}, 8")
        k.e(f"s_add_u32 s43, s{S_NONCE}, {n}")
        k.e("v_mov_b32 v4, s43")
        k.e(f"s_lshl_b32 s44, s{S_I}, 2")
        k.e("v_mov_b32 v5, s44")
        k.e("s_mov_b64 exec, 1")
        sf, dn = k.newlabel("fsafe"), k.newlabel("fdone")
        k.e(f"s_cmp_eq_u32 s{S_MODE}, 0")
        k.e(f"s_cbranch_scc1 {sf}")
        k.e(f"buffer_store_dword v4, v5, s[{SRD_WS}:{SRD_WS+3}], s42 offen")
        k.e(f"s_branch {dn}")
        k.label(sf)
        k.e(f"buffer_store_dword v4, v5, s[{SRD_WS}:{SRD_WS+3}], s42 offen sc1")
        k.label(dn)
        k.e("s_mov_b64 exec, 0xffff")
        k.e(f"v_lshlrev_b32 v5, 2, v{V_L16}")
        k.e(f"s_mov_b32 s45, {POLL_MAX}")
        top, got = k.newlabel("ptop"), k.newlabel("pgot")
        k.label(top)
        k.e(f"buffer_load_dword v6, v5, s[{SRD_WS}:{SRD_WS+3}], s42 offen sc1")
        k.e("s_waitcnt vmcnt(0)")
        k.e("v_subrev_u32 v6, s43, v6")
        k.e(f"v_cmp_lt_u32 vcc, {4-n}, v6")
        k.nop(2)
        k.e("s_cmp_eq_u64 vcc, 0")
        k.e(f"s_cbranch_scc1 {got}")
        k.e("s_sub_u32 s45, s45, 1")
        k.e("s_cmp_lg_u32 s45, 0")
        k.e(f"s_cbranch_scc1 {top}")
        k.label(got)
        k.e("s_mov_b64 exec, -1")
        k.e(f"s_cmp_lg_u32 s{S_MODE}, 0")
        k.e(f"s_cbranch_scc1 {skip}")
        k.e("buffer_inv sc1")
        k.e("s_waitcnt vmcnt(0)")
        k.label(skip)
        k.e("s_barrier")

    A1_WL = 0
    A1_XL = 65536

    def a1(self):
        k = self.k
        k.c("================ A1: qkv = LN1(x) @ wqkv")
        WL, XL = self.A1_WL, self.A1_XL
        VXO, VWO, VXR, VWR = 16, 21, 25, 29
        ACC, XF, WF = 64, 136, 208
        k.e(f"s_mul_i32 s42, s{S_W}, 36")
        k.e(f"v_lshrrev_b32 v4, 3, v{V_LANE}")
        k.e(f"v_and_b32 v5, 7, v{V_LANE}")
        k.e(f"s_lshl_b32 s43, s{S_G}, 7")
        k.e("s_sub_u32 s43, s43, 16")
        for q in range(5):
            k.e(f"s_add_u32 s44, s42, {8*q}")
            k.e("v_add_u32 v6, s44, v4")
            k.e("v_bfe_u32 v7, v6, 1, 3")
            k.e("v_xor_b32 v7, v7, v5")
            k.e("v_add_u32 v6, s43, v6")
            k.e("v_max_i32 v6, 0, v6")
            k.e("v_mul_u32_u24 v6, 1280, v6")
            k.e(f"v_lshl_add_u32 v{VXO+q}, v7, 4, v6")
        k.e(f"s_lshl_b32 s44, s{S_W}, 4")
        for q in range(4):
            k.e(f"v_lshlrev_b32 v6, 1, v{V_G}")
            if q >> 1:
                k.e("v_add_u32 v6, 8, v6")
            k.e(f"v_xor_b32 v6, v6, v{V_L16}")
            k.e(f"s_add_u32 s45, s44, {4*q}")
            k.e(f"v_add_u32 v7, s45, v{V_G}")
            k.e("v_mul_u32_u24 v7, 3840, v7")
            k.e(f"v_lshl_add_u32 v{VWO+q}, v6, 4, v7")
        k.e(f"v_lshrrev_b32 v4, 1, v{V_L16}")
        for s in range(2):
            k.e(f"v_add_u32 v6, {4*s}, v{V_G}")
            k.e("v_xor_b32 v6, v6, v4")
            k.e("v_lshlrev_b32 v6, 4, v6")
            k.e(f"v_lshl_add_u32 v6, v{V_L16}, 7, v6")
            k.e(f"v_add_u32 v{VXR+2*s}, {XL}, v6")
            k.e(f"v_add_u32 v{VXR+2*s+1}, {XL+2*18432}, v6")
        k.e(f"v_lshrrev_b32 v4, 2, v{V_L16}")
        k.e(f"v_and_b32 v5, 1, v{V_G}")
        k.e("v_lshl_or_b32 v5, v5, 2, v4")
        k.e(f"v_lshl_add_u32 v6, v{V_G}, 3, v4")
        k.e("v_lshlrev_b32 v6, 8, v6")
        k.e(f"v_and_b32 v7, 1, v{V_L16}")
        k.e("v_lshl_add_u32 v6, v7, 3, v6")
        k.e(f"v_bfe_u32 v7, v{V_L16}, 1, 1")
        k.e("v_lshl_add_u32 v6, v7, 4, v6")
        for nt in range(2):
            k.e(f"s_lshl_b32 s44, s{S_W}, 1")
            k.e(f"s_add_u32 s44, s44, {nt}")
            k.e("v_xor_b32 v7, s44, v5")
            k.e(f"v_lshl_add_u32 v{VWR+nt}, v7, 5, v6")
            if WL:
                k.e(f"v_add_u32 v{VWR+nt}, {WL}, v{VWR+nt}")
        k.e(f"s_cmp_eq_u32 s{S_W}, 0")
        k.e("s_cselect_b32 s64, 0xffffff00, -1")
        k.e(f"s_mul_i32 s46, s{S_W}, {36*128}")
        k.e(f"s_add_u32 s46, s46, {XL}")
        k.e(f"s_lshl_b32 s47, s{S_W}, 12")
        if WL:
            k.e(f"s_add_u32 s47, s47, {WL}")
        k.e(f"s_lshl_b32 s48, s{S_I}, 8")
        k.e(f"v_and_b32 v4, 31, v{V_LANE}")
        k.e(f"v_lshrrev_b32 v5, 5, v{V_LANE}")
        k.e("v_mul_u32_u24 v5, 18432, v5")
        k.e("v_lshl_add_u32 v4, v4, 2, v5")
        k.e(f"v_add_u32 v4, {XL}, v4")
        k.e("v_mov_b32 v5, 0x3f803f80")
        k.ds("ds_write_b32 v4, v5", "ones")
        k.ds("ds_write_b32 v4, v5 offset:36864", "ones")

        def dma_stage(st):
            slot = st % 4
            ops = []
            def pre():
                k.e(f"s_mov_b32 s49, {128*st}")
                k.e(f"s_add_u32 s50, s48, {64*3840*st}")
            ops.append(pre)
            for q in range(5):
                def x(q=q):
                    k.e(f"s_add_u32 m0, s46, {slot*18432 + q*1024}")
                    if q == 0:
                        k.e("s_mov_b32 exec_lo, s64")
                    elif q == 4:
                        k.e("s_mov_b32 exec_hi, 0")
                    else:
                        k.e("s_nop 0")
                    k.vmem(f"buffer_load_dwordx4 v{VXO+q}, s[{SRD_X}:{SRD_X+3}], s49 offen lds", ("st", st))
                    if q == 0:
                        k.e("s_mov_b32 exec_lo, -1")
                    elif q == 4:
                        k.e("s_mov_b32 exec_hi, -1")
                ops.append(x)
            for q in range(4):
                def w(q=q):
                    k.e(f"s_add_u32 m0, s47, {slot*16384 + q*1024}")
                    k.e("s_nop 0")
                    k.vmem(f"buffer_load_dwordx4 v{VWO+q}, s[{SRD_W}:{SRD_W+3}], s50 offen lds", ("st", st))
                ops.append(w)
            return ops

        def reads(t):
            st, s = t // 2, t % 2
            slot = st % 4
            b = t % 2
            ops = []
            for nt in range(2):
                for h in range(2):
                    def r(nt=nt, h=h):
                        d = WF + 8*b + 4*nt + 2*h
                        k.ds(f"ds_read_b64_tr_b16 v[{d}:{d+1}], v{VWR+nt} offset:{slot*16384 + s*8192 + h*1024}", ("w", t))
                    ops.append(r)
            for mt in range(9):
                def r(mt=mt):
                    d = XF + 36*b + 4*mt
                    k.ds(f"ds_read_b128 v[{d}:{d+3}], v{VXR + 2*s + (slot >> 1)} offset:{(slot & 1)*18432 + mt*2048}", ("x", t, mt))
                ops.append(r)
            return ops

        def mfmas(t):
            b = t % 2
            ops = []
            for mt in range(9):
                for nt in range(2):
                    def m(mt=mt, nt=nt):
                        if nt == 0:
                            if mt == 0:
                                k.wait_lg(("w", t))
                            k.wait_lg(("x", t, mt))
                        a = ACC + (mt*2 + nt)*4
                        c = "0" if t == 0 else f"v[{a}:{a+3}]"
                        k.e(f"v_mfma_f32_16x16x32_bf16 v[{a}:{a+3}], v[{WF+8*b+4*nt}:{WF+8*b+4*nt+3}], v[{XF+36*b+4*mt}:{XF+36*b+4*mt+3}], {c}")
                    ops.append(m)
            return ops

        self.nonce_load("nonce0")
        for st in range(4):
            for op in dma_stage(st):
                op()
        self.stats_compute()
        self.stamp()
        k.wait_vm(("st", 0))
        k.wait_lg_all()
        k.e("s_barrier")
        self.stamp()
        for op in reads(0):
            op()
        for t in range(20):
            fill = []
            sig = (t + 1) // 2
            if t % 2 == 1 and sig < 10:
                k.wait_lg(("x", t, 8))
                k.wait_vm(("st", sig))
                k.e("s_barrier")
                if sig == 2:
                    self.nonce_check()
                    self.stats_publish()
                if sig == 7:
                    self.granule_loads("gran")
            if t + 1 < 20:
                fill += reads(t + 1)
            m = mfmas(t)
            seq = interleave(m, fill, start=0, every=1)
            if t % 2 == 1 and sig + 3 < 10:
                seq = interleave(seq, dma_stage(sig + 3), start=6, every=2)
            for op in seq:
                op()
        self.stamp()
        k.wait_vm("gran")
        self.granule_check()
        k.nop(8)
        CS = 40
        for nt in range(2):
            for r in range(4):
                k.e(f"v_mov_b32_dpp v{CS+4*nt+r}, v{ACC+4*nt+r} row_newbcast:0 row_mask:0xf bank_mask:0xf")
        k.e(f"v_and_b32 v4, 1, v{V_G}")
        k.e(f"v_lshrrev_b32 v5, 1, v{V_G}")
        k.e("v_lshl_add_u32 v4, v4, 1, v5")
        k.e(f"s_lshl_b32 s44, s{S_W}, 2")
        k.e("v_add_u32 v4, s44, v4")
        k.e(f"v_mul_u32_u24 v4, {RS}, v4")
        k.e(f"v_lshl_add_u32 v48, v{V_L16}, 4, v4")
        k.e(f"s_mul_i32 s44, s{S_G}, {QKV_G}")
        k.e(f"s_mul_i32 s45, s{S_I}, {16*RS}")
        k.e("s_add_u32 s44, s44, s45")
        k.e(f"s_add_u32 s44, s44, {WS_QKV}")
        items = []
        for mt in range(9):
            g = self.GR[mt]
            P = XF + 4*mt
            for nt in range(2):
                a = ACC + (mt*2 + nt)*4
                for r in range(0, 4, 2):
                    k.e(f"v_pk_fma_f32 v[{a+r}:{a+r+1}], v[{CS+4*nt+r}:{CS+4*nt+r+1}], v[{g}:{g+1}], v[{a+r}:{a+r+1}] op_sel_hi:[1,0,1] neg_lo:[0,1,0] neg_hi:[0,1,0]")
            for nt in range(2):
                a = ACC + (mt*2 + nt)*4
                for r in range(0, 4, 2):
                    k.e(f"v_pk_mul_f32 v[{a+r}:{a+r+1}], v[{a+r}:{a+r+1}], v[{g}:{g+1}] op_sel:[0,1] op_sel_hi:[1,1]")
            for nt in range(2):
                a = ACC + (mt*2 + nt)*4
                k.e(f"v_cvt_pk_bf16_f32 v{P+2*nt}, v{a}, v{a+1}")
                k.e(f"v_cvt_pk_bf16_f32 v{P+2*nt+1}, v{a+2}, v{a+3}")
        k.nop(2)
        for mt in range(9):
            P = XF + 4*mt
            k.e(f"v_permlane16_swap_b32 v{P}, v{P+2}")
            k.e(f"v_permlane16_swap_b32 v{P+1}, v{P+3}")
        for mt in range(9):
            P = XF + 4*mt
            items.append(f"buffer_store_dwordx4 v[{P}:{P+3}], v48, s[{SRD_WS}:{SRD_WS+3}], s44 offen offset:{256*mt}")
        k.nop(1)
        self.stores(items, "qkvst")
        self.stamp()

    def helper(self):
        k = self.k
        k.c("================ helper")
        self.nonce_load("nonce0")
        self.stats_compute()
        k.wait_vm("nonce0")
        self.nonce_check()
        self.stats_publish()
        self.srd(SRD_W, P_WO, 640 * 1280)
        k.e(f"s_mul_i32 s46, s{S_G}, 40")
        for p in range(3):
            k.e(f"v_lshl_add_u32 v4, v{V_G}, 2, s{S_W}")
            k.e(f"v_add_u32 v{61+p}, {16*p}, v4")
            k.e(f"v_min_u32 v5, 39, v{61+p}")
            k.e("v_add_u32 v5, s46, v5")
            k.e("v_mul_u32_u24 v7, 1280, v5")
            k.e(f"v_lshl_add_u32 v7, v{V_L16}, 4, v7")
            self.rowsum_loads(SRD_W, 7, 64 + 20*p, ("rm", p))
        k.e("v_mov_b32 v8, 0x3f803f80")
        for p in range(3):
            k.wait_vm(("rm", p))
            for j in range(20):
                r = 64 + 20*p + j
                if j < 2:
                    k.e(f"v_dot2_f32_bf16 v{10+j}, v{r}, v8, 0")
                else:
                    k.e(f"v_dot2_f32_bf16 v{10+(j&1)}, v{r}, v8, v{10+(j&1)}")
            k.nop(3)
            k.e("v_add_f32 v10, v10, v11")
            k.nop(1)
            self.row_reduce16([10])
            k.e("v_mul_f32 v10, 0x3acccccd, v10")
            k.e(f"v_lshlrev_b32 v12, 2, v{61+p}")
            k.ds("ds_write_b32 v12, v10", "rmw")
        k.wait_lg_all()
        k.e("s_barrier")
        skip = k.newlabel("rmskip")
        k.e(f"s_cmp_lg_u32 s{S_W}, 0")
        k.e(f"s_cbranch_scc1 {skip}")
        k.e("s_mov_b64 exec, 0xfffff")
        k.e(f"v_lshlrev_b32 v4, 3, v{V_LANE}")
        k.e("ds_read_b64 v[6:7], v4")
        k.e("s_waitcnt lgkmcnt(0)")
        k.e("v_cvt_pk_bf16_f32 v6, v6, v7")
        k.e(f"v_lshlrev_b32 v4, 2, v{V_LANE}")
        k.e(f"s_mul_i32 s44, s{S_G}, 80")
        k.e(f"s_add_u32 s44, s44, {WS_RMH}")
        k.e(f"buffer_store_dword v6, v4, s[{SRD_WS}:{SRD_WS+3}], s44 offen sc1")
        k.e("s_waitcnt vmcnt(0)")
        k.e("s_mov_b64 exec, 1")
        k.e(f"v_mov_b32 v6, s{S_NONCE}")
        k.e(f"s_lshl_b32 s44, s{S_G}, 2")
        k.e(f"s_add_u32 s44, s44, {WS_RMF}")
        k.e("v_mov_b32 v4, 0")
        k.e(f"buffer_store_dword v6, v4, s[{SRD_WS}:{SRD_WS+3}], s44 offen sc1")
        k.e("s_mov_b64 exec, -1")
        k.label(skip)
        k.wait_vm_all()
        self.granule_loads("gran")
        k.wait_vm("gran")
        self.granule_check()

    A2_L = 102400

    def a2(self):
        k = self.k
        k.c("================ A2: attention")
        L = self.A2_L
        k.e(f"v_lshlrev_b32 v16, 4, v{V_LANE}")
        k.e(f"s_mul_i32 s46, s{S_G}, {QKV_G}")
        k.e(f"s_mul_i32 s47, s{S_I}, {5*RS}")
        k.e("s_add_u32 s46, s46, s47")
        k.e(f"s_add_u32 s46, s46, {WS_QKV}")
        k.e(f"s_mul_i32 s47, s{S_W}, 9")
        for q in range(9):
            k.e(f"s_add_u32 s48, s47, {q}")
            k.e("s_mul_i32 s49, s48, 43")
            k.e("s_lshr_b32 s49, s49, 9")
            k.e(f"s_mul_i32 s49, s49, {80*RS - 12288}")
            k.e("s_lshl_b32 s48, s48, 10")
            k.e("s_add_u32 s49, s49, s48")
            k.e(f"s_add_u32 m0, s48, {L}")
            k.e("s_add_u32 s49, s49, s46")
            k.vmem(f"buffer_load_dwordx4 v16, s[{SRD_WS}:{SRD_WS+3}], s49 offen sc1 lds", "qkv")
        k.e(f"s_lshr_b32 s50, s{S_W}, 1")
        k.e(f"s_and_b32 s51, s{S_W}, 1")
        k.e("s_lshl_b32 s51, s51, 6")
        k.e(f"v_add_u32 v17, s51, v{V_LANE}")
        k.e("v_add_u32 v4, 2, v17")
        k.e("v_lshlrev_b32 v4, 4, v4")
        k.e(f"s_mul_i32 s52, s50, {3*RS}")
        k.e(f"s_add_u32 s52, s52, {L}")
        k.e("v_add_u32 v18, s52, v4")
        k.e("s_lshl_b32 s52, s50, 3")
        k.e(f"s_add_u32 s52, s52, {L + 2*RS}")
        k.e("v_add_u32 v19, s52, v4")
        k.wait_vm("qkv")
        k.e("s_barrier")
        self.stamp()
        Q, KK, VV, LG = 64, 80, 160, 20

        def rd(dst, run, j, tag):
            off = run*12288 + 224 - 32*j
            k.ds(f"ds_read_b128 v[{dst}:{dst+3}], v18 offset:{off}", tag)
            k.ds(f"ds_read_b128 v[{dst+4}:{dst+7}], v18 offset:{off+RS}", tag)
            k.ds(f"ds_read_b64 v[{dst+8}:{dst+9}], v19 offset:{off}", tag)
        rd(Q, 0, 0, "q")
        for j in range(8):
            rd(KK + 10*j, 1, j, ("k", j))
        nv = 0
        for jp in range(4):
            k.wait_lg(("k", 2*jp + 1))
            for d in range(10):
                for j in (2*jp, 2*jp + 1):
                    c = "0" if d == 0 else f"v{LG+j}"
                    k.e(f"v_dot2_f32_bf16 v{LG+j}, v{Q+d}, v{KK+10*j+d}, {c}")
            for j in (2*jp, 2*jp + 1):
                rd(VV + 10*j, 2, j, ("v", j))
        k.nop(3)
        nomask = k.newlabel("nomask")
        k.e(f"s_cmp_lg_u32 s{S_G}, 0")
        k.e(f"s_cbranch_scc1 {nomask}")
        k.e("v_mov_b32 v4, 0xf149f2ca")
        for j in range(1, 8):
            k.e(f"v_cmp_le_u32 vcc, {2*j}, v17")
            k.nop(2)
            k.e(f"v_cndmask_b32 v{LG+j}, v4, v{LG+j}, vcc")
        k.label(nomask)
        k.e(f"v_max3_f32 v4, v{LG}, v{LG+1}, v{LG+2}")
        k.e(f"v_max3_f32 v5, v{LG+3}, v{LG+4}, v{LG+5}")
        k.e(f"v_max3_f32 v4, v4, v{LG+6}, v{LG+7}")
        k.e("v_max_f32 v4, v4, v5")
        c = (20 ** -0.5) * 1.4426950408889634
        import struct
        cb = struct.unpack("<I", struct.pack("<f", c))[0]
        k.e(f"s_mov_b32 s53, {hex(cb)}")
        k.e("v_mul_f32 v4, s53, v4")
        for j in range(8):
            k.e(f"v_fma_f32 v{LG+j}, v{LG+j}, s53, -v4")
        for j in range(8):
            k.e(f"v_exp_f32 v{LG+j}, v{LG+j}")
        k.nop(1)
        k.e(f"v_add_f32 v4, v{LG}, v{LG+1}")
        k.e(f"v_add_f32 v5, v{LG+2}, v{LG+3}")
        k.e(f"v_add_f32 v6, v{LG+4}, v{LG+5}")
        k.e(f"v_add_f32 v7, v{LG+6}, v{LG+7}")
        k.e("v_add_f32 v4, v4, v5")
        k.e("v_add_f32 v6, v6, v7")
        k.e("v_add_f32 v4, v4, v6")
        k.e("v_rcp_f32 v4, v4")
        k.nop(1)
        for j in range(8):
            k.e(f"v_mul_f32 v{LG+j}, v{LG+j}, v4")
        PP = 28
        for jj in range(4):
            k.e(f"v_cvt_pk_bf16_f32 v{PP+jj}, v{LG+2*jj}, v{LG+2*jj+1}")
        k.e("s_mov_b32 s54, 0x05040100")
        k.e("s_mov_b32 s55, 0x07060302")
        O = 32
        T = 8
        for jj in range(4):
            k.wait_lg(("v", 2*jj + 1))
            for d0 in range(0, 10, 2):
                for dd in range(2):
                    d = d0 + dd
                    k.e(f"v_perm_b32 v{T+2*dd}, v{VV+10*(2*jj+1)+d}, v{VV+10*(2*jj)+d}, s54")
                    k.e(f"v_perm_b32 v{T+2*dd+1}, v{VV+10*(2*jj+1)+d}, v{VV+10*(2*jj)+d}, s55")
                for dd in range(2):
                    d = d0 + dd
                    for hi in range(2):
                        o = O + 2*d + hi
                        cc = "0" if jj == 0 else f"v{o}"
                        k.e(f"v_dot2_f32_bf16 v{o}, v{T+2*dd+hi}, v{PP+jj}, {cc}")
                T = 8 if T == 12 else 12
        k.nop(3)
        R = 64
        for d in range(10):
            k.e(f"v_cvt_pk_bf16_f32 v{R+d}, v{O+2*d}, v{O+2*d+1}")
        k.e("v_lshlrev_b32 v4, 4, v17")
        k.e("s_lshl_b32 s52, s50, 3")
        k.e("v_add_u32 v5, s52, v4")
        k.e(f"s_mul_i32 s46, s{S_G}, {O_G}")
        k.e(f"s_mul_i32 s47, s{S_I}, {5*RS}")
        k.e("s_add_u32 s46, s46, s47")
        k.e(f"s_add_u32 s46, s46, {WS_O}")
        k.e(f"s_mul_i32 s47, s50, {3*RS}")
        k.e("s_add_u32 s47, s47, s46")
        k.e(f"s_add_u32 s48, s46, {2*RS}")
        items = [
            f"buffer_store_dwordx4 v[{R}:{R+3}], v4, s[{SRD_WS}:{SRD_WS+3}], s47 offen",
            f"buffer_store_dwordx4 v[{R+4}:{R+7}], v4, s[{SRD_WS}:{SRD_WS+3}], s47 offen offset:{RS}",
            f"buffer_store_dwordx2 v[{R+8}:{R+9}], v5, s[{SRD_WS}:{SRD_WS+3}], s48 offen",
        ]
        self.stores(items, "ost")
        self.stamp()

    def idx10(self, q, dst_row, dst_pos):
        k = self.k
        k.e(f"v_add_u32 v4, {64*q}, v{V_LANE}")
        k.e("v_mul_u32_u24 v5, 6554, v4")
        k.e(f"v_lshrrev_b32 v{dst_row}, 16, v5")
        k.e(f"v_mul_u32_u24 v5, 10, v{dst_row}")
        k.e(f"v_sub_u32 v{dst_pos}, v4, v5")

    B_WL = 0
    B_RED = 102400

    def b(self):
        k = self.k
        k.c("================ B: h = x + o @ wo, centred")
        WL, RED = self.B_WL, self.B_RED
        VWO, VWR, VXO = 16, 21, 22
        ACC, WF, XRES, MEANX = 64, 112, 152, 162
        XA, RMA = 0, 80
        self.srd(SRD_W, P_WO, 640 * 1280)
        k.e(f"s_and_b32 s46, s{S_I}, 7")
        k.e(f"s_lshr_b32 s47, s{S_I}, 3")
        k.e(f"s_lshr_b32 s48, s{S_W}, 1")
        k.e(f"s_and_b32 s49, s{S_W}, 1")
        for q in range(5):
            self.idx10(q, 6, 7)
            k.e("v_and_b32 v8, 0x13, v6")
            k.e("v_bfe_u32 v9, v6, 2, 1")
            k.e("v_lshl_or_b32 v8, v9, 3, v8")
            k.e("v_bfe_u32 v9, v6, 3, 1")
            k.e("v_lshl_or_b32 v8, v9, 2, v8")
            k.e("v_mul_u32_u24 v8, 1280, v8")
            k.e(f"v_lshl_add_u32 v{VWO+q}, v7, 4, v8")
        k.e("s_mul_i32 s50, s46, 160")
        k.e(f"s_mul_i32 s51, s{S_W}, {32*1280}")
        k.e("s_add_u32 s50, s50, s51")
        k.e(f"s_mul_i32 s51, s{S_W}, 5120")
        if WL:
            k.e(f"s_add_u32 s51, s51, {WL}")
        for u in range(5):
            for q in range(5):
                k.e(f"s_add_u32 m0, s51, {u*4*5120 + q*1024}")
                k.e(f"s_add_u32 s52, s50, {u*4*32*1280}")
                k.vmem(f"buffer_load_dwordx4 v{VWO+q}, s[{SRD_W}:{SRD_W+3}], s52 offen lds", "wo")
        k.e(f"v_mul_u32_u24 v{VXO}, {RS}, v{V_G}")
        k.e("s_lshl_b32 s52, s47, 6")
        k.e("s_lshl_b32 s53, s49, 5")
        k.e("s_add_u32 s52, s52, s53")
        k.e(f"v_add_u32 v4, s52, v{V_L16}")
        k.e(f"v_lshl_add_u32 v{VXO}, v4, 4, v{VXO}")
        k.e(f"s_mul_i32 s54, s{S_G}, {O_G}")
        k.e(f"s_mul_i32 s55, s48, {40*RS}")
        k.e("s_add_u32 s54, s54, s55")
        k.e(f"s_add_u32 s54, s54, {WS_O}")
        top, got = k.newlabel("rtop"), k.newlabel("rgot")
        k.e(f"v_lshlrev_b32 v5, 2, v{V_L16}")
        k.e(f"s_mov_b32 s45, {POLL_MAX}")
        k.e(f"s_mov_b32 s44, {WS_RMF}")
        k.label(top)
        k.e(f"buffer_load_dword v6, v5, s[{SRD_WS}:{SRD_WS+3}], s44 offen sc1")
        k.e("s_waitcnt vmcnt(0)")
        k.e(f"v_cmp_ne_u32 vcc, s{S_NONCE}, v6")
        k.nop(2)
        k.e("s_cmp_eq_u64 vcc, 0")
        k.e(f"s_cbranch_scc1 {got}")
        k.e("s_sub_u32 s45, s45, 1")
        k.e("s_cmp_lg_u32 s45, 0")
        k.e(f"s_cbranch_scc1 {top}")
        k.label(got)
        k.vm = []
        k.e(f"v_lshlrev_b32 v23, 4, v{V_G}")
        k.e("s_mul_i32 s56, s48, 640")
        k.e(f"s_add_u32 s56, s56, {WS_RMH}")
        for s in range(10):
            for mt in range(2):
                d = XA + (s*2 + mt)*4
                k.vmem(f"buffer_load_dwordx4 a[{d}:{d+3}], v{VXO}, s[{SRD_WS}:{SRD_WS+3}], s54 offen offset:{256*mt} sc1", ("x", s))
            d = RMA + 4*s
            k.vmem(f"buffer_load_dwordx4 a[{d}:{d+3}], v23, s[{SRD_WS}:{SRD_WS+3}], s56 offen offset:{64*s} sc1", ("x", s))
            if s < 9:
                k.e(f"s_add_u32 s54, s54, {4*RS}")
        k.e("s_lshl_b32 s53, s48, 4")
        k.e("s_add_u32 s57, s52, s53")
        k.e(f"v_add_u32 v24, s57, v{V_L16}")
        k.e(f"s_lshl_b32 s53, s{S_G}, 7")
        k.e("v_add_u32 v4, s53, v24")
        k.e("v_mul_u32_u24 v4, 1280, v4")
        k.e(f"v_lshl_add_u32 v25, v{V_G}, 3, v4")
        k.e("s_mul_i32 s58, s46, 160")
        for t in range(5):
            k.vmem(f"buffer_load_dwordx2 v[{XRES+2*t}:{XRES+2*t+1}], v25, s[{SRD_X}:{SRD_X+3}], s58 offen offset:{32*t}", "xres")
        k.e("v_add_u32 v4, 16, v24")
        k.e("v_lshlrev_b32 v4, 4, v4")
        k.e(f"s_lshl_b32 s59, s{S_G}, 12")
        k.e(f"s_add_u32 s59, s59, {WS_STAT}")
        k.vmem(f"buffer_load_dword v{MEANX}, v4, s[{SRD_WS}:{SRD_WS+3}], s59 offen sc1", "xres")
        k.e(f"v_lshrrev_b32 v4, 2, v{V_L16}")
        k.e(f"v_and_b32 v5, 1, v{V_G}")
        k.e("v_lshl_add_u32 v4, v5, 2, v4")
        k.e(f"v_lshrrev_b32 v5, 1, v{V_G}")
        k.e("v_lshl_add_u32 v4, v5, 4, v4")
        k.e("v_mul_u32_u24 v4, 160, v4")
        k.e(f"v_and_b32 v5, 3, v{V_L16}")
        k.e("v_lshl_add_u32 v4, v5, 3, v4")
        k.e("s_mul_i32 s53, s48, 51200")
        if WL:
            k.e(f"s_add_u32 s53, s53, {WL}")
        k.e(f"v_add_u32 v{VWR}, s53, v4")
        k.e("s_barrier")
        self.stamp()

        def reads(s):
            b = s % 2
            ops = []
            for t in range(5):
                for h in range(2):
                    def r(t=t, h=h):
                        d = WF + 20*b + 4*t + 2*h
                        k.ds(f"ds_read_b64_tr_b16 v[{d}:{d+1}], v{VWR} offset:{s*5120 + h*1280 + 32*t}", ("w", s, t))
                    ops.append(r)
            return ops

        def mfmas(s):
            b = s % 2
            ops = []
            for t in range(6):
                for mt in range(2):
                    def m(t=t, mt=mt):
                        if t == 0 and mt == 0:
                            k.wait_vm(("x", s))
                        if mt == 0 and t < 5:
                            k.wait_lg(("w", s, t))
                        a = ACC + (t*2 + mt)*4
                        c = "0" if s == 0 else f"v[{a}:{a+3}]"
                        A = f"v[{WF+20*b+4*t}:{WF+20*b+4*t+3}]" if t < 5 else f"a[{RMA+4*s}:{RMA+4*s+3}]"
                        k.e(f"v_mfma_f32_16x16x32_bf16 v[{a}:{a+3}], {A}, a[{XA+(s*2+mt)*4}:{XA+(s*2+mt)*4+3}], {c}")
                    ops.append(m)
            return ops

        for op in reads(0):
            op()
        for s in range(10):
            fill = reads(s + 1) if s < 9 else []
            for op in interleave(mfmas(s), fill):
                op()
        self.stamp()
        k.nop(8)
        k.e(f"s_mul_i32 s53, s{S_W}, 5376")
        k.e(f"s_add_u32 s53, s53, {RED}")
        k.e(f"v_lshlrev_b32 v26, 4, v{V_LANE}")
        k.e("v_add_u32 v26, s53, v26")
        k.e(f"v_lshlrev_b32 v27, 2, v{V_LANE}")
        k.e("v_add_u32 v27, s53, v27")
        keep1, kdone = k.newlabel("keep1"), k.newlabel("kdone")
        k.e("s_cmp_lg_u32 s48, 0")
        k.e(f"s_cbranch_scc1 {keep1}")
        for t in range(5):
            a = ACC + (t*2 + 1)*4
            k.e(f"ds_write_b128 v26, v[{a}:{a+3}] offset:{1024*t}")
        k.e(f"ds_write_b32 v27, v{ACC+(5*2+1)*4} offset:5120")
        k.e(f"s_branch {kdone}")
        k.label(keep1)
        for t in range(5):
            a = ACC + (t*2)*4
            k.e(f"ds_write_b128 v26, v[{a}:{a+3}] offset:{1024*t}")
        k.e(f"ds_write_b32 v27, v{ACC+(5*2)*4} offset:5120")
        k.e("s_waitcnt lgkmcnt(0)")
        for t in range(6):
            a = ACC + (t*2)*4
            for r in range(4 if t < 5 else 1):
                k.e(f"v_mov_b32 v{a+r}, v{a+4+r}")
        k.label(kdone)
        k.e("s_waitcnt lgkmcnt(0)")
        k.lg = []
        k.e("s_barrier")
        k.e(f"s_xor_b32 s53, s{S_W}, 2")
        k.e("s_mul_i32 s53, s53, 5376")
        k.e(f"s_add_u32 s53, s53, {RED}")
        k.e(f"v_lshlrev_b32 v26, 4, v{V_LANE}")
        k.e("v_add_u32 v26, s53, v26")
        k.e(f"v_lshlrev_b32 v27, 2, v{V_LANE}")
        k.e("v_add_u32 v27, s53, v27")
        for t in range(5):
            a = ACC + (t*2 + 1)*4
            k.ds(f"ds_read_b128 v[{a}:{a+3}], v26 offset:{1024*t}", "red")
        k.ds(f"ds_read_b32 v{ACC+(5*2+1)*4}, v27 offset:5120", "red")
        k.wait_vm("xres")
        k.wait_lg("red")
        for t in range(5):
            a = ACC + (t*2)*4
            for r in range(0, 4, 2):
                k.e(f"v_pk_add_f32 v[{a+r}:{a+r+1}], v[{a+r}:{a+r+1}], v[{a+4+r}:{a+4+r+1}]")
        d = ACC + (5*2)*4
        k.e(f"v_add_f32 v{d}, v{d}, v{d+4}")
        k.e(f"v_add_f32 v{d}, v{d}, v{MEANX}")
        for t in range(5):
            a = ACC + (t*2)*4
            for half in range(2):
                x = XRES + 2*t + half
                k.e(f"v_lshlrev_b32 v4, 16, v{x}")
                k.e(f"v_and_b32 v5, 0xffff0000, v{x}")
                k.e(f"v_pk_add_f32 v[{a+2*half}:{a+2*half+1}], v[{a+2*half}:{a+2*half+1}], v[4:5]")
        for t in range(5):
            a = ACC + (t*2)*4
            k.e(f"v_cvt_pk_bf16_f32 v{V_HRES+2*t}, v{a}, v{a+1}")
            k.e(f"v_cvt_pk_bf16_f32 v{V_HRES+2*t+1}, v{a+2}, v{a+3}")
        for t in range(5):
            a = ACC + (t*2)*4
            for r in range(0, 4, 2):
                k.e(f"v_pk_add_f32 v[{a+r}:{a+r+1}], v[{a+r}:{a+r+1}], v[{d}:{d+1}] op_sel_hi:[1,0] neg_lo:[0,1] neg_hi:[0,1]")
        k.e("v_mov_b32 v6, 0")
        k.e("v_mov_b32 v7, 0")
        for t in range(5):
            a = ACC + (t*2)*4
            for r in range(0, 4, 2):
                k.e(f"v_pk_fma_f32 v[6:7], v[{a+r}:{a+r+1}], v[{a+r}:{a+r+1}], v[6:7]")
        k.e("v_add_f32 v6, v6, v7")
        P = WF
        for t in range(5):
            a = ACC + (t*2)*4
            k.e(f"v_cvt_pk_bf16_f32 v{P+2*t}, v{a}, v{a+1}")
            k.e(f"v_cvt_pk_bf16_f32 v{P+2*t+1}, v{a+2}, v{a+3}")
        k.e("v_mov_b32 v7, v6")
        k.nop(2)
        k.e("v_permlane32_swap_b32 v6, v7")
        k.nop(1)
        k.e("v_add_f32 v6, v6, v7")
        k.e("v_mov_b32 v7, v6")
        k.nop(2)
        k.e("v_permlane16_swap_b32 v6, v7")
        k.nop(1)
        k.e("v_add_f32 v6, v6, v7")
        k.e(f"v_mov_b32 v{P+10}, v{P+8}")
        k.e(f"v_mov_b32 v{P+11}, v{P+9}")
        k.nop(2)
        for a2 in range(2):
            k.e(f"v_permlane16_swap_b32 v{P+4*a2}, v{P+4*a2+2}")
            k.e(f"v_permlane16_swap_b32 v{P+4*a2+1}, v{P+4*a2+3}")
        k.e(f"v_permlane16_swap_b32 v{P+8}, v{P+10}")
        k.e(f"v_permlane16_swap_b32 v{P+9}, v{P+11}")
        k.e(f"v_and_b32 v4, 1, v{V_G}")
        k.e(f"v_lshrrev_b32 v5, 1, v{V_G}")
        k.e("v_lshl_add_u32 v4, v4, 1, v5")
        k.e(f"v_mul_u32_u24 v4, {RS}, v4")
        k.e("v_lshl_add_u32 v8, v24, 4, v4")
        k.e(f"v_mul_u32_u24 v5, {RS}, v5")
        k.e("v_lshl_add_u32 v9, v24, 4, v5")
        k.e("v_lshlrev_b32 v10, 2, v24")
        k.e(f"s_mul_i32 s53, s{S_G}, {O_G}")
        k.e(f"s_mul_i32 s54, s46, {10*RS}")
        k.e("s_add_u32 s53, s53, s54")
        k.e(f"s_add_u32 s53, s53, {WS_H}")
        k.e(f"s_add_u32 s54, s53, {4*RS}")
        k.e(f"s_add_u32 s55, s53, {8*RS}")
        k.e(f"s_lshl_b32 s56, s{S_G}, 12")
        k.e("s_lshl_b32 s58, s46, 9")
        k.e("s_add_u32 s56, s56, s58")
        k.e(f"s_add_u32 s56, s56, {WS_PS}")
        items = [
            f"buffer_store_dwordx4 v[{P}:{P+3}], v8, s[{SRD_WS}:{SRD_WS+3}], s53 offen",
            f"buffer_store_dwordx4 v[{P+4}:{P+7}], v8, s[{SRD_WS}:{SRD_WS+3}], s54 offen",
            f"buffer_store_dwordx4 v[{P+8}:{P+11}], v9, s[{SRD_WS}:{SRD_WS+3}], s55 offen",
            f"buffer_store_dword v6, v10, s[{SRD_WS}:{SRD_WS+3}], s56 offen",
        ]
        self.stores(items, "hst")
        self.stamp()

    C_NSLOT = 12

    def ps_rstd(self, dst, mu_v, sel_v, nper, tmp):
        k = self.k
        k.e(f"v_lshlrev_b32 v{tmp}, 2, v{mu_v}")
        k.e(f"v_mul_u32_u24 v{tmp+1}, {512*nper}, v{sel_v}")
        k.e(f"v_add_u32 v{tmp}, v{tmp}, v{tmp+1}")
        k.e(f"s_lshl_b32 s59, s{S_G}, 12")
        k.e(f"s_add_u32 s59, s59, {WS_PS}")
        for j in range(nper):
            k.vmem(f"buffer_load_dword v{dst+j}, v{tmp}, s[{SRD_WS}:{SRD_WS+3}], s59 offen offset:{512*j} sc1", "ps")

    def c(self):
        k = self.k
        k.c("================ C: hh = sigmoid(g) * u")
        VWO, VWR, VXO = 16, 20, 24
        ACC, WF = 64, 160
        NS = self.C_NSLOT
        k.e(f"s_cmp_lt_u32 s{S_W}, 2")
        k.e(f"s_cselect_b32 s{SRD_W}, s{P_GATE}, s{P_UP}")
        k.e(f"s_cselect_b32 s{SRD_W+1}, s{P_GATE+1}, s{P_UP+1}")
        k.e(f"s_mov_b32 s{SRD_W+2}, {hex(640*3072)}")
        k.e(f"s_mov_b32 s{SRD_W+3}, 0x20000")
        for q in range(3):
            k.e(f"v_add_u32 v4, {64*q}, v{V_LANE}")
            k.e("v_mul_u32_u24 v5, 5462, v4")
            k.e("v_lshrrev_b32 v6, 16, v5")
            k.e("v_mul_u32_u24 v5, 12, v6")
            k.e("v_sub_u32 v5, v4, v5")
            k.e("v_mul_u32_u24 v6, 3072, v6")
            k.e(f"v_lshl_add_u32 v{VWO+q}, v5, 4, v6")
        k.e(f"s_and_b32 s46, s{S_W}, 1")
        k.e(f"s_lshr_b32 s47, s{S_W}, 1")
        k.e(f"s_mul_i32 s48, s{S_I}, 192")
        k.e(f"s_mul_i32 s49, s46, {16*3072}")
        k.e("s_add_u32 s48, s48, s49")
        k.e("s_mul_i32 s49, s47, 6144")
        k.e("s_mul_i32 s50, s46, 3072")
        k.e("s_add_u32 s49, s49, s50")

        def dma(t):
            ops = []
            slot = t % NS
            for q in range(3):
                def d(q=q):
                    k.e(f"s_add_u32 m0, s49, {slot*12288 + q*1024}")
                    k.e(f"s_add_u32 s50, s48, {t*32*3072}")
                    k.vmem(f"buffer_load_dwordx4 v{VWO+q}, s[{SRD_W}:{SRD_W+3}], s50 offen lds", ("w", t))
                ops.append(d)
            return ops
        for t in range(NS):
            for op in dma(t):
                op()
        k.wait_vm(("w", 5))
        k.e(f"v_and_b32 v25, 31, v{V_LANE}")
        k.e(f"s_lshl_b32 s51, s{S_W}, 5")
        k.e("v_add_u32 v25, s51, v25")
        k.e(f"v_lshrrev_b32 v26, 5, v{V_LANE}")
        k.e(f"v_mul_u32_u24 v{VXO}, {RS}, v26")
        k.e(f"v_lshl_add_u32 v{VXO}, v25, 4, v{VXO}")
        k.e(f"s_mul_i32 s52, s{S_G}, {O_G}")
        k.e(f"s_add_u32 s52, s52, {WS_H}")
        self.ps_rstd(28, 25, 26, 4, 4)
        for s16 in range(40):
            k.vmem(f"buffer_load_dwordx4 a[{4*s16}:{4*s16+3}], v{VXO}, s[{SRD_WS}:{SRD_WS+3}], s52 offen sc1", ("x", s16))
            if s16 < 39:
                k.e(f"s_add_u32 s52, s52, {2*RS}")
        k.e(f"v_lshrrev_b32 v4, 2, v{V_L16}")
        k.e(f"v_lshrrev_b32 v5, 1, v{V_G}")
        k.e("v_lshl_add_u32 v4, v5, 3, v4")
        k.e("v_mul_u32_u24 v4, 192, v4")
        k.e(f"v_and_b32 v5, 1, v{V_G}")
        k.e("v_lshl_add_u32 v4, v5, 5, v4")
        k.e(f"v_and_b32 v5, 3, v{V_L16}")
        k.e(f"v_lshl_add_u32 v{VWR}, v5, 3, v4")
        k.e(f"v_add_u32 v{VWR+1}, 49152, v{VWR}")
        k.e(f"v_add_u32 v{VWR+2}, 98304, v{VWR}")
        k.wait_vm("ps")
        k.e("v_add_f32 v28, v28, v29")
        k.e("v_add_f32 v30, v30, v31")
        k.e("v_add_f32 v28, v28, v30")
        k.e("v_mov_b32 v29, v28")
        k.nop(2)
        k.e("v_permlane32_swap_b32 v28, v29")
        k.nop(1)
        k.e("v_add_f32 v28, v28, v29")
        k.e("v_mul_f32 v28, 0x3acccccd, v28")
        k.e("v_add_f32 v28, 0x3727c5ac, v28")
        k.e("v_rsq_f32 v28, v28")
        k.nop(1)
        k.e("v_mul_f32 v27, 0xbfb8aa3b, v28")
        self.stamp()

        def reads(u):
            t, kap = u // 2, u % 2
            slot = t % NS
            b = u % 2
            base = VWR + slot // 4
            ops = []
            for n in range(6):
                mat, nn = n // 3, n % 3
                for h in range(2):
                    def r(n=n, mat=mat, nn=nn, h=h):
                        d = WF + 24*b + 4*n + 2*h
                        off = (slot % 4)*12288 + mat*6144 + kap*3072 + h*768 + 64*nn
                        k.ds(f"ds_read_b64_tr_b16 v[{d}:{d+1}], v{base} offset:{off}", ("w", u, n))
                    ops.append(r)
            return ops

        def mfmas(u):
            b = u % 2
            ops = []
            for n in range(6):
                def m(n=n):
                    if n == 0:
                        k.wait_vm(("x", u))
                    k.wait_lg(("w", u, n))
                    a = ACC + 16*n
                    c = "0" if u == 0 else f"v[{a}:{a+15}]"
                    k.e(f"v_mfma_f32_32x32x16_bf16 v[{a}:{a+15}], v[{WF+24*b+4*n}:{WF+24*b+4*n+3}], a[{4*u}:{4*u+3}], {c}")
                ops.append(m)
            return ops

        k.wait_vm(("w", 1))
        k.e("s_barrier")
        for op in reads(0):
            op()
        for u in range(40):
            fill = []
            nxt = u + 1
            extra = []
            if nxt < 40 and nxt % 4 == 0:
                ss = nxt // 4
                k.wait_lg(("w", u, 5))
                k.wait_vm(("w", 2*ss + 1))
                k.e("s_barrier")
                for t in (2*(ss - 1) + NS, 2*(ss - 1) + NS + 1):
                    if t < 20:
                        extra += dma(t)
            if nxt < 40:
                fill = reads(nxt)
            m = mfmas(u)
            seq = interleave(m, [lambda a=fill[2*j], b2=fill[2*j+1]: (a(), b2()) for j in range(len(fill)//2)])
            if extra:
                seq = interleave(seq, extra, start=1, every=2)
            for op in seq:
                op()
        self.stamp()
        k.nop(12)
        k.e(f"s_mul_i32 s52, s{S_G}, {HH_G}")
        k.e(f"s_mul_i32 s53, s{S_I}, {12*RS}")
        k.e("s_add_u32 s52, s52, s53")
        k.e(f"s_add_u32 s52, s52, {WS_HH}")
        items = []
        for nn in range(3):
            gA, uA = ACC + 16*nn, ACC + 48 + 16*nn
            for r in range(0, 16, 2):
                k.e(f"v_pk_mul_f32 v[{gA+r}:{gA+r+1}], v[{gA+r}:{gA+r+1}], v[26:27] op_sel:[0,1] op_sel_hi:[1,1]")
            for r in range(16):
                k.e(f"v_exp_f32 v{gA+r}, v{gA+r}")
            k.nop(1)
            k.e("v_mov_b32 v4, 1.0")
            k.e("v_mov_b32 v5, 1.0")
            for r in range(0, 16, 2):
                k.e(f"v_pk_add_f32 v[{gA+r}:{gA+r+1}], v[{gA+r}:{gA+r+1}], v[4:5]")
            for r in range(16):
                k.e(f"v_rcp_f32 v{gA+r}, v{gA+r}")
            k.nop(1)
            for r in range(0, 16, 2):
                k.e(f"v_pk_mul_f32 v[{gA+r}:{gA+r+1}], v[{gA+r}:{gA+r+1}], v[{uA+r}:{uA+r+1}]")
            P = WF + 8*nn
            for r in range(0, 16, 2):
                k.e(f"v_cvt_pk_bf16_f32 v{P+r//2}, v{gA+r}, v{gA+r+1}")
            for half in range(2):
                so = 54 + 2*nn + half
                k.e(f"s_add_u32 s{so}, s52, {(4*nn + 2*half)*RS}")
                items.append(f"buffer_store_dwordx4 v[{P+4*half}:{P+4*half+3}], v{VXO}, s[{SRD_WS}:{SRD_WS+3}], s{so} offen")
        self.stores(items, "hhst")
        self.stamp()

    D_NSLOT = 7

    def d(self):
        k = self.k
        k.c("================ D: out = h + rstd * (hh @ w_down)")
        VWO, VWR, VXO = 16, 21, 24
        ACC, WF = 64, 112
        NS = self.D_NSLOT
        self.srd(SRD_W, P_DOWN, 1536 * 1280)
        k.e(f"s_and_b32 s46, s{S_I}, 7")
        k.e(f"s_lshr_b32 s47, s{S_I}, 3")
        k.e(f"s_lshr_b32 s48, s{S_W}, 1")
        k.e(f"s_and_b32 s49, s{S_W}, 1")
        for q in range(5):
            self.idx10(q, 6, 7)
            k.e("v_mul_u32_u24 v8, 1280, v6")
            k.e(f"v_lshl_add_u32 v{VWO+q}, v7, 4, v8")
        k.e("s_mul_i32 s50, s46, 160")
        k.e(f"s_mul_i32 s51, s48, {24*32*1280}")
        k.e("s_add_u32 s50, s50, s51")
        k.e(f"s_mul_i32 s51, s49, {32*1280}")
        k.e("s_add_u32 s50, s50, s51")
        k.e("s_mul_i32 s51, s48, 10240")
        k.e("s_mul_i32 s52, s49, 5120")
        k.e("s_add_u32 s51, s51, s52")

        def dma(st):
            ops = []
            slot = st % NS
            for q in range(5):
                def d(q=q):
                    k.e(f"s_add_u32 m0, s51, {slot*20480 + q*1024}")
                    k.e(f"s_add_u32 s52, s50, {st*2*32*1280}")
                    k.vmem(f"buffer_load_dwordx4 v{VWO+q}, s[{SRD_W}:{SRD_W+3}], s52 offen lds", ("w", st))
                ops.append(d)
            return ops
        for st in range(NS):
            for op in dma(st):
                op()
        k.wait_vm(("w", 1))
        k.e(f"v_mul_u32_u24 v{VXO}, {RS}, v{V_G}")
        k.e("s_lshl_b32 s53, s47, 6")
        k.e("s_lshl_b32 s54, s49, 5")
        k.e("s_add_u32 s53, s53, s54")
        k.e(f"v_add_u32 v4, s53, v{V_L16}")
        k.e(f"v_lshl_add_u32 v{VXO}, v4, 4, v{VXO}")
        k.e(f"s_mul_i32 s54, s{S_G}, {HH_G}")
        k.e(f"s_mul_i32 s55, s48, {96*RS}")
        k.e("s_add_u32 s54, s54, s55")
        k.e(f"s_add_u32 s54, s54, {WS_HH}")
        k.e("s_lshl_b32 s55, s48, 4")
        k.e("s_add_u32 s57, s53, s55")
        k.e(f"v_add_u32 v25, s57, v{V_L16}")
        self.ps_rstd(28, 25, V_G, 2, 4)

        def xload(s):
            for mt in range(2):
                d = (s*2 + mt)*4
                k.vmem(f"buffer_load_dwordx4 a[{d}:{d+3}], v{VXO}, s[{SRD_WS}:{SRD_WS+3}], s54 offen offset:{256*mt} sc1", ("x", s))
            if s < 23:
                k.e(f"s_add_u32 s54, s54, {4*RS}")
        NX0 = 14
        for s in range(NX0):
            xload(s)
        k.e(f"v_lshrrev_b32 v4, 2, v{V_L16}")
        k.e(f"v_and_b32 v5, 1, v{V_G}")
        k.e("v_lshl_add_u32 v4, v5, 2, v4")
        k.e(f"v_lshrrev_b32 v5, 1, v{V_G}")
        k.e("v_lshl_add_u32 v4, v5, 4, v4")
        k.e("v_mul_u32_u24 v4, 160, v4")
        k.e(f"v_and_b32 v5, 3, v{V_L16}")
        k.e("v_lshl_add_u32 v4, v5, 3, v4")
        k.e("s_mul_i32 s55, s48, 10240")
        k.e(f"v_add_u32 v{VWR}, s55, v4")
        k.e(f"v_add_u32 v{VWR+1}, {3*20480}, v{VWR}")
        k.e(f"v_add_u32 v{VWR+2}, {6*20480}, v{VWR}")

        def reads(s):
            st, par = s // 2, s % 2
            slot = st % NS
            b = s % 2
            ops = []
            for t in range(5):
                for h in range(2):
                    def r(t=t, h=h):
                        d = WF + 20*b + 4*t + 2*h
                        off = (slot % 3)*20480 + par*5120 + h*1280 + 32*t
                        k.ds(f"ds_read_b64_tr_b16 v[{d}:{d+1}], v{VWR + slot//3} offset:{off}", ("w", s, t))
                    ops.append(r)
            return ops

        def mfmas(s):
            b = s % 2
            ops = []
            for t in range(5):
                for mt in range(2):
                    def m(t=t, mt=mt):
                        if t == 0 and mt == 0:
                            k.wait_vm(("x", s))
                        if mt == 0:
                            k.wait_lg(("w", s, t))
                        a = ACC + (t*2 + mt)*4
                        c = "0" if s == 0 else f"v[{a}:{a+3}]"
                        k.e(f"v_mfma_f32_16x16x32_bf16 v[{a}:{a+3}], v[{WF+20*b+4*t}:{WF+20*b+4*t+3}], a[{(s*2+mt)*4}:{(s*2+mt)*4+3}], {c}")
                    ops.append(m)
            return ops
        k.wait_vm(("w", 0))
        k.e("s_barrier")
        self.stamp()
        for op in reads(0):
            op()
        for s in range(24):
            nxt = s + 1
            extra = []
            if nxt < 24 and nxt % 2 == 0:
                st = nxt // 2
                k.wait_lg(("w", s, 4))
                k.wait_vm(("w", st))
                k.e("s_barrier")
                t = st - 1 + NS
                if t < 12:
                    extra += dma(t)
            if NX0 + s < 24:
                extra = [lambda s=s: xload(NX0 + s)] + extra
            fill = reads(nxt) if nxt < 24 else []
            seq = interleave(mfmas(s), fill)
            if extra:
                seq = interleave(seq, extra, start=1, every=2)
            for op in seq:
                op()
        self.stamp()
        k.wait_vm("ps")
        k.e("v_add_f32 v28, v28, v29")
        k.e("v_mov_b32 v29, v28")
        k.nop(2)
        k.e("v_permlane32_swap_b32 v28, v29")
        k.nop(1)
        k.e("v_add_f32 v28, v28, v29")
        k.e("v_mov_b32 v29, v28")
        k.nop(2)
        k.e("v_permlane16_swap_b32 v28, v29")
        k.nop(1)
        k.e("v_add_f32 v28, v28, v29")
        k.e("v_mul_f32 v28, 0x3acccccd, v28")
        k.e("v_add_f32 v28, 0x3727c5ac, v28")
        k.e("v_rsq_f32 v28, v28")
        k.wait_lg_all()
        k.e("s_barrier")
        RED = 0
        k.e(f"s_mul_i32 s53, s{S_W}, 5120")
        k.e(f"v_lshlrev_b32 v26, 4, v{V_LANE}")
        k.e("v_add_u32 v26, s53, v26")
        keep1, kdone = k.newlabel("dkeep1"), k.newlabel("dkdone")
        k.e("s_cmp_lg_u32 s48, 0")
        k.e(f"s_cbranch_scc1 {keep1}")
        for t in range(5):
            a = ACC + (t*2 + 1)*4
            k.e(f"ds_write_b128 v26, v[{a}:{a+3}] offset:{RED + 1024*t}")
        k.e(f"s_branch {kdone}")
        k.label(keep1)
        for t in range(5):
            a = ACC + (t*2)*4
            k.e(f"ds_write_b128 v26, v[{a}:{a+3}] offset:{RED + 1024*t}")
        k.e("s_waitcnt lgkmcnt(0)")
        for t in range(5):
            a = ACC + (t*2)*4
            for r in range(4):
                k.e(f"v_mov_b32 v{a+r}, v{a+4+r}")
        k.label(kdone)
        k.e("s_waitcnt lgkmcnt(0)")
        k.e("s_barrier")
        k.e(f"s_xor_b32 s53, s{S_W}, 2")
        k.e("s_mul_i32 s53, s53, 5120")
        k.e(f"v_lshlrev_b32 v26, 4, v{V_LANE}")
        k.e("v_add_u32 v26, s53, v26")
        for t in range(5):
            a = ACC + (t*2 + 1)*4
            k.ds(f"ds_read_b128 v[{a}:{a+3}], v26 offset:{RED + 1024*t}", "red")
        k.wait_lg("red")
        for t in range(5):
            a = ACC + (t*2)*4
            for r in range(0, 4, 2):
                k.e(f"v_pk_add_f32 v[{a+r}:{a+r+1}], v[{a+r}:{a+r+1}], v[{a+4+r}:{a+4+r+1}]")
        P = WF
        for t in range(5):
            a = ACC + (t*2)*4
            for half in range(2):
                x = V_HRES + 2*t + half
                k.e(f"v_lshlrev_b32 v4, 16, v{x}")
                k.e(f"v_and_b32 v5, 0xffff0000, v{x}")
                k.e(f"v_pk_fma_f32 v[{a+2*half}:{a+2*half+1}], v[{a+2*half}:{a+2*half+1}], v[28:29], v[4:5] op_sel_hi:[1,0,1]")
            k.e(f"v_cvt_pk_bf16_f32 v{P+2*t}, v{a}, v{a+1}")
            k.e(f"v_cvt_pk_bf16_f32 v{P+2*t+1}, v{a+2}, v{a+3}")
        k.e(f"v_mov_b32 v{P+10}, v{P+8}")
        k.e(f"v_mov_b32 v{P+11}, v{P+9}")
        k.nop(2)
        for a2 in range(2):
            k.e(f"v_permlane16_swap_b32 v{P+4*a2}, v{P+4*a2+2}")
            k.e(f"v_permlane16_swap_b32 v{P+4*a2+1}, v{P+4*a2+3}")
        k.e(f"v_permlane16_swap_b32 v{P+8}, v{P+10}")
        k.e(f"v_permlane16_swap_b32 v{P+9}, v{P+11}")
        k.e(f"s_lshl_b32 s53, s{S_G}, 7")
        k.e("v_add_u32 v6, s53, v25")
        k.e("v_mul_u32_u24 v6, 1280, v6")
        k.e(f"v_and_b32 v4, 1, v{V_G}")
        k.e(f"v_lshrrev_b32 v5, 1, v{V_G}")
        k.e("v_lshl_add_u32 v4, v4, 1, v5")
        k.e("v_lshl_add_u32 v8, v4, 4, v6")
        k.e("v_lshl_add_u32 v9, v5, 4, v6")
        k.e("s_mul_i32 s53, s46, 160")
        k.vmem(f"buffer_store_dwordx4 v[{P}:{P+3}], v8, s[{SRD_OUT}:{SRD_OUT+3}], s53 offen", "out")
        k.vmem(f"buffer_store_dwordx4 v[{P+4}:{P+7}], v8, s[{SRD_OUT}:{SRD_OUT+3}], s53 offen offset:64", "out")
        k.vmem(f"buffer_store_dwordx4 v[{P+8}:{P+11}], v9, s[{SRD_OUT}:{SRD_OUT+3}], s53 offen offset:128", "out")
        self.stamp()

    def finish(self):
        k = self.k
        k.label("L_fin")
        if self.stamps:
            k.e("s_waitcnt vmcnt(0)")
            k.e(f"s_lshl_b32 s42, s2, 2")
            k.e(f"s_add_u32 s42, s42, s{S_W}")
            k.e("s_lshl_b32 s42, s42, 8")
            k.e(f"s_add_u32 s42, s42, {WS_DBG}")
            k.e(f"v_lshlrev_b32 v4, 2, v{V_LANE}")
            k.e(f"buffer_store_dword v{V_STAMP}, v4, s[{SRD_WS}:{SRD_WS+3}], s42 offen")
        k.e("s_waitcnt vmcnt(0)")
        k.label("L_end")
        k.e("s_endpgm")

    def build(self):
        k = self.k
        self.prologue()
        self.stats_issue()
        k.e(f"s_cmp_eq_u32 s{S_I}, 15")
        k.e("s_cbranch_scc1 L_helper")
        vm0, lg0 = list(k.vm), list(k.lg)
        self.a1()
        k.wait_vm_all()
        k.e("s_branch L_s1")
        k.label("L_helper")
        k.vm, k.lg = vm0, lg0
        ns = self.nstamp
        self.helper()
        k.label("L_s1")
        order = [("a1", None), ("a2", self.a2), ("b", self.b), ("c", self.c), ("d", self.d)]
        for n, (name, fn) in enumerate(order):
            if fn is not None:
                fn()
            if self.stop_after == name:
                k.wait_vm_all()
                k.e("s_branch L_fin")
                break
            if n < 4:
                self.sync(n + 1)
                self.stamp()
        self.finish()
        return self.wrap()

    def wrap(self):
        head = []
        head.append("; @launch grid=(256,1,1) block=(256,1,1) lds=163840")
        head.append('.amdgcn_target "amdgcn-amd-amdhsa--gfx950"')
        head.append(".text")
        head.append(f".globl {NAME}")
        head.append(".p2align 8")
        head.append(f".type {NAME},@function")
        head.append(f"{NAME}:")
        tail = f"""
.section .rodata,"a"
.p2align 6
.amdhsa_kernel {NAME}
  .amdhsa_next_free_vgpr 512
  .amdhsa_next_free_sgpr 102
  .amdhsa_accum_offset 256
  .amdhsa_group_segment_fixed_size 0
  .amdhsa_kernarg_size 80
  .amdhsa_user_sgpr_count 2
  .amdhsa_user_sgpr_kernarg_segment_ptr 1
  .amdhsa_system_sgpr_workgroup_id_x 1
.end_amdhsa_kernel
"""
        return "\n".join(head) + "\n" + self.k.text() + tail


if __name__ == "__main__":
    import argparse
    ap = argparse.ArgumentParser()
    ap.add_argument("-o", default="k.s")
    ap.add_argument("--stop", default=None)
    ap.add_argument("--stamps", action="store_true")
    ap.add_argument("--safe", action="store_true")
    a = ap.parse_args()
    g = Gen(stop_after=a.stop, stamps=a.stamps, force_safe=a.safe)
    open(a.o, "w").write(g.build())
    print("wrote", a.o, "stamps:", g.nstamp)
```
